```python
import torch

def _softmax(x, axis=-1):
    return torch.softmax(x, dim=axis)
def _gelu(x):
    return torch.nn.functional.gelu(x, approximate="tanh")
def _silu(x):
    return torch.nn.functional.silu(x)
def _sigmoid(x):
    return torch.sigmoid(x)
def _layernorm(x, axis=-1, eps=1e-5):
    m = x.mean(dim=axis, keepdim=True)
    v = x.var(dim=axis, keepdim=True, unbiased=False)
    return (x - m) / torch.sqrt(v + eps)
def _scatter_add(tgt, idx, src, axis=0):
    return tgt.clone().index_add_(axis, idx, src)
def _segment_sum(src, seg, n):
    out = torch.zeros((n,) + src.shape[1:], dtype=src.dtype)
    return out.index_add_(0, seg, src)
def _pad(x, pw):
    flat = tuple(v for pair in reversed(pw) for v in pair)
    return torch.nn.functional.pad(x, flat)

kernel_name = 'standalone__gqa_block_cached__near_ridge'

def setup_inputs():

    _w = (lambda a: (lambda t: t.to(torch.bfloat16) if t.is_floating_point() else t)(torch.as_tensor(a)))
    B, Sq, D = 8, 240, 640
    Hq, Hkv, Sk, Dh = 32, 32, 1024, 192
    assert Hq % Hkv == 0, (Hq, Hkv)
    return {
        "x": _w((lambda *s: torch.randn(*s, dtype=torch.bfloat16) * 0.8)(B, Sq, D)),
        "k_cache": _w((lambda *s: torch.randn(*s, dtype=torch.bfloat16) * 0.8)(B, Hkv, Sk, Dh)),
        "v_cache": _w((lambda *s: torch.randn(*s, dtype=torch.bfloat16) * 0.05)(B, Hkv, Sk, Dh)),
        "wq": _w((lambda *s: torch.randn(*s, dtype=torch.bfloat16) * 0.8)(D, Hq * Dh) * (D ** -0.5)),
        "wo": _w((lambda *s: torch.randn(*s, dtype=torch.bfloat16) * 0.05)(Hq * Dh, D) * ((Hq * Dh) ** -0.5)),
    }

def reference(x, k_cache, v_cache, wq, wo):
    B, Sq, D = x.shape
    Hq, Dh = 32, 192
    Hkv = k_cache.shape[1]
    rep = Hq // Hkv
    q = (lambda x, *d: x.permute(*d))((x @ wq).reshape(B, Sq, Hq, Dh), 0, 2, 1, 3)
    k = (lambda x, n, axis: torch.repeat_interleave(x, n, dim=axis))(k_cache, rep, axis=1)
    v = (lambda x, n, axis: torch.repeat_interleave(x, n, dim=axis))(v_cache, rep, axis=1)
    scores = torch.einsum("bhqd,bhkd->bhqk", q, k) * (Dh ** -0.5)
    p = _softmax(scores, axis=-1)
    o = torch.einsum("bhqk,bhkd->bhqd", p, v)
    return (lambda x, *d: x.permute(*d))(o, 0, 2, 1, 3).reshape(B, Sq, Hq * Dh) @ wo
```

```python
import re

def R(kind, lo, n=1): return [f"{kind}{lo+i}" for i in range(n)]
def rng(kind, lo, n): return f"{kind}{lo}" if n == 1 else f"{kind}[{lo}:{lo+n-1}]"

class Op:
    __slots__ = ("text", "kind", "rd", "wr", "rtag", "wtag", "earliest", "cost", "meta", "key")
    def __init__(self, text, kind, rd=(), wr=(), rtag=None, wtag=None, earliest=0, meta=None):
        self.text = text; self.kind = kind; self.rd = list(rd); self.wr = list(wr)
        self.rtag = rtag or []
        self.wtag = wtag
        self.earliest = earliest
        self.cost = 2 if kind in ("trans", "dma", "vload", "vstore") else 1
        self.meta = meta or {}
        self.key = None
    def __repr__(self): return self.text

def mfma(d, a, b, c, rtag=None, wtag=None):
    rd = R(a[0], a[1], 4) + R(b[0], b[1], 4) + (R(c[0], c[1], 4) if c else [])
    ct = rng(c[0], c[1], 4) if c else "0"
    o = Op(f"v_mfma_f32_16x16x32_bf16 {rng(d[0],d[1],4)}, {rng(a[0],a[1],4)}, {rng(b[0],b[1],4)}, {ct}", "mfma", rd, R(d[0], d[1], 4), rtag, wtag)
    o.meta = {"ab": R(a[0], a[1], 4) + R(b[0], b[1], 4), "c": R(c[0], c[1], 4) if c else [], "d": R(d[0], d[1], 4)}
    return o
def valu(text, rd, wr, **k): return Op(text, "valu", rd, wr, **k)
def trans(text, rd, wr, **k): return Op(text, "trans", rd, wr, **k)
def salu(text, rd=(), wr=(), **k): return Op(text, "salu", rd, wr, **k)
def label(name): return Op(name + ":", "label")
def raw(text): return Op(text, "raw")
def nop(n): return Op(f"s_nop {n}", "nop", meta={"n": n})

_regre = re.compile(r"\b([vas])(\d+)\b|\b([vas])\[(\d+):(\d+)\]|\b(vcc|m0|scc|exec)\b")
def regs_of(s):
    out = []
    for m in _regre.finditer(s):
        if m.group(1): out.append(m.group(1) + m.group(2))
        elif m.group(3): out += R(m.group(3), int(m.group(4)), int(m.group(5)) - int(m.group(4)) + 1)
        else: out.append(m.group(6))
    return out
TRANS = ("v_exp_f32", "v_rcp_f32", "v_log_f32", "v_rsq_f32")
def I(text, **k):
    mn, _, rest = text.partition(" ")
    ops = [x.strip() for x in rest.split(",")]
    if mn.startswith("v_"):
        wr = regs_of(ops[0]); rd = regs_of(",".join(ops[1:]))
        if mn.startswith("v_permlane") and "swap" in mn:
            wr = wr + rd; rd = list(wr)
            return Op(text, "valu", rd, wr, meta={"permlane": 1}, **k)
        if mn.startswith(("v_fmac", "v_mac")): rd = rd + wr
        if mn.startswith("v_cndmask") and len(ops) == 3: rd.append("vcc")
        if mn.startswith("v_readfirstlane"): return Op(text, "valu", rd, wr, meta={"rfl": 1}, **k)
        return Op(text, "trans" if mn.replace("_e32", "").replace("_e64", "") in TRANS else "valu", rd, wr, **k)
    if mn.startswith("s_cmp"): return Op(text, "salu", regs_of(rest), ["scc"], **k)
    if mn.startswith("s_"):
        wr = regs_of(ops[0]); rd = regs_of(",".join(ops[1:]))
        if mn.startswith(("s_add", "s_sub", "s_lshl", "s_lshr", "s_and", "s_or", "s_mul_hi")): wr = wr + ["scc"]
        if mn.startswith(("s_addc", "s_cselect")): rd.append("scc")
        return Op(text, "salu", rd, wr, **k)
    raise ValueError(text)

def ds_read(text, dst, addr, tile=None, wtag=None):
    return Op(text, "lds", [addr], dst, wtag=wtag, meta={"tile": tile})
def dma(text, rd, tile, slot):
    return Op(text, "dma", rd + ["m0"], [], meta={"tile": tile, "slot": slot})
def vload(text, dst, rd, wtag=None): return Op(text, "vload", rd, dst, wtag=wtag)
def vstore(text, data, rd, rtag=None): return Op(text, "vstore", data + rd, [], rtag=rtag, meta={"data": data})
def barrier(need=()): return Op("s_barrier", "barrier", meta={"need": list(need)})
def waitreq(regs=(), tiles=(), lds_all=False, key=None, age=0, rtiles=()):
    o = Op("", "waitreq", meta={"regs": list(regs), "tiles": list(tiles), "lds_all": lds_all, "age": age, "rtiles": list(rtiles)}); o.key = key; return o

class Prog:
    def __init__(self, waittab=None):
        self.ops = []
        self.lq = []
        self.vq = []
        self.nm = 0
        self.waittab = waittab
        self.waitseen = {}
    def emit(self, o):
        if isinstance(o, (list, tuple)):
            for x in o: self.emit(x)
            return
        if o.kind == "waitreq": return self._wait(o)
        self.ops.append(o)
        if o.kind == "lds": self.lq.append((o, self.nm))
        elif o.kind in ("dma", "vload", "vstore"): self.vq.append((o, self.nm))
        elif o.kind == "mfma": self.nm += 1
        elif o.kind == "wait":
            vm, lg = o.meta["vm"], o.meta["lg"]
            if vm is not None and len(self.vq) > vm: self.vq = self.vq[len(self.vq) - vm:] if vm else []
            if lg is not None and len(self.lq) > lg: self.lq = self.lq[len(self.lq) - lg:] if lg else []
    def need(self, o):
        regs = set(o.meta["regs"]); tiles = set(o.meta["tiles"])
        vm = lg = None
        for i, (x, _) in enumerate(self.vq):
            if regs & set(x.wr) or (x.kind == "dma" and x.meta["tile"] in tiles): vm = len(self.vq) - 1 - i
        for i, (x, _) in enumerate(self.lq):
            if regs & set(x.wr) or o.meta["lds_all"] or x.meta.get("tile") in o.meta.get("rtiles", ()): lg = len(self.lq) - 1 - i
        if lg is not None and o.meta["age"]:
            for i, (x, m) in enumerate(self.lq):
                if self.nm - m >= o.meta["age"]: lg = min(lg, len(self.lq) - 1 - i)
        if vm is not None: vm = min(vm, 63)
        if lg is not None: lg = min(lg, 15)
        return vm, lg
    def _wait(self, o):
        vm, lg = self.need(o)
        if o.key is not None:
            def mn(a, b): return b if a is None else (a if b is None else min(a, b))
            p = self.waitseen.get(o.key, (None, None))
            self.waitseen[o.key] = (mn(p[0], vm), mn(p[1], lg))
            if self.waittab is not None:
                p = self.waittab.get(o.key, (None, None))
                assert mn(p[0], vm) == p[0] and mn(p[1], lg) == p[1], (o.key, p, vm, lg)
                vm, lg = p
        if vm is None and lg is None: return False
        self.emit(wait(vm, lg)); return True

def wait(vm=None, lg=None):
    t = "s_waitcnt" + (f" vmcnt({vm})" if vm is not None else "") + (f" lgkmcnt({lg})" if lg is not None else "")
    return Op(t, "wait", meta={"vm": vm, "lg": lg})

def states(o):
    if o.kind in ("label", "raw"): return 0
    if o.kind == "nop": return o.meta["n"] + 1
    return 1
VAL = ("valu", "trans")
MEM = ("lds", "dma", "vload", "vstore")
def hazard(p, c):
    pw = set(p.wr); need = 0
    if p.kind in VAL:
        vw = {r for r in pw if r[0] in "va" and r != "vcc"}
        sw = {r for r in pw if r[0] == "s" or r == "vcc"}
        if c.kind == "mfma" and vw & set(c.rd): need = max(need, 2)
        if p.kind == "trans" and c.kind in ("valu", "trans", "vstore", "lds") and vw & set(c.rd): need = max(need, 1)
        if c.kind in VAL and c.meta.get("permlane") and vw & set(c.rd): need = max(need, 2)
        if c.kind in VAL and c.meta.get("rfl") and vw & set(c.rd): need = max(need, 1)
        if c.kind in VAL and sw & set(c.rd): need = max(need, 2)
        if c.kind in MEM and sw & set(c.rd): need = max(need, 5)
        if c.kind == "salu" and sw & set(c.rd): need = max(need, 1)
    if p.kind == "mfma":
        d = set(p.meta["d"])
        if c.kind in VAL and d & (set(c.rd) | set(c.wr)): need = max(need, 8)
        if c.kind in MEM and d & (set(c.rd) | set(c.wr)): need = max(need, 8)
        if c.kind == "mfma":
            if d & set(c.meta["ab"]): need = max(need, 8)
            cc = set(c.meta["c"])
            if d & cc and d != cc: need = max(need, 6)
            if d & set(c.meta["d"]) and not (d & cc): need = max(need, 6)
        if c.kind in VAL and set(p.meta["c"]) & set(c.wr): need = max(need, 3)
    if p.kind == "salu" and "m0" in pw and c.kind == "dma": need = max(need, 1)
    if p.kind == "vstore" and len(p.meta["data"]) >= 3 and set(p.meta["data"]) & set(c.wr): need = max(need, 2)
    return need

def missing_states(ops, c):
    dist = 0; miss = 0
    for p in reversed(ops[-24:]):
        h = hazard(p, c)
        if h > dist: miss = max(miss, h - dist)
        dist += states(p)
        if dist >= 8: break
    return miss

def emit_safe(P, o):
    if isinstance(o, (list, tuple)):
        for x in o: emit_safe(P, x)
        return
    if o.kind == "waitreq": P.emit(o); return
    if o.kind not in ("label", "raw", "wait", "nop", "barrier"):
        P.emit(waitreq(regs=o.rd + o.wr))
        m = missing_states(P.ops, o)
        if m: P.emit(nop(m - 1))
    P.emit(o)

def check(ops, verbose=False, private=()):
    tags = {}; lq = []; vq = []
    visible = set(); issued = {}; slot_tile = {}; reads_open = {}
    fenced = set(); errs = []
    for i, o in enumerate(ops):
        if o.kind in ("label", "raw"): continue
        m = missing_states(ops[max(0, i - 24):i], o)
        if m: errs.append(f"hazard at {i}: {o.text} missing {m}")
        touched = set(o.rd) | set(o.wr)
        for x in lq + vq:
            if touched & set(x.wr): errs.append(f"pending load at {i}: {o.text} vs {x.text}")
        for regs, t in o.rtag:
            for r in regs:
                if tags.get(r) != t: errs.append(f"tag at {i}: {o.text}: {r} has {tags.get(r)} expected {t}")
        for r in o.wr: tags[r] = o.wtag
        if o.kind == "lds":
            lq.append(o)
            t = o.meta.get("tile")
            if t is not None:
                if t[0] in private:
                    if any(x.kind == "dma" and x.meta["tile"] == t for x in vq): errs.append(f"private tile {t} not landed at {i}")
                elif t not in visible: errs.append(f"tile {t} not visible at {i}: {o.text}")
                for s_ in issued[t]:
                    if slot_tile.get(s_) != t: errs.append(f"tile {t} overwritten at {i}")
                fenced.discard(t); reads_open[t] = 1
        elif o.kind in ("dma", "vload", "vstore"):
            vq.append(o)
            if len(vq) > 63: errs.append(f"vmcnt overflow at {i}")
            if o.kind == "dma":
                t, sl = o.meta["tile"], o.meta["slot"]
                for s in sl:
                    old = slot_tile.get(s)
                    if old is not None and old != t:
                        if old[0] in private and t[0] in private:
                            if any(x.meta.get("tile") == old for x in lq): errs.append(f"private slot {s} WAR at {i}")
                        elif old not in fenced: errs.append(f"slot {s} WAR at {i}: tile {old} not fenced before {t}")
                    slot_tile[s] = t
                issued[t] = sl
        elif o.kind == "wait":
            vm, lg = o.meta["vm"], o.meta["lg"]
            if vm is not None and len(vq) > vm: vq = vq[len(vq) - vm:] if vm else []
            if lg is not None and len(lq) > lg: lq = lq[len(lq) - lg:] if lg else []
        elif o.kind == "barrier":
            pend = {x.meta["tile"] for x in vq if x.kind == "dma"}
            cnt = {}
            for t in issued:
                if t not in pend: visible.add(t)
            pr = {x.meta.get("tile") for x in lq}
            for t in list(reads_open):
                if t not in pr: fenced.add(t); del reads_open[t]
            for t in o.meta["need"]:
                if t not in visible: errs.append(f"barrier at {i}: tile {t} not complete")
    return errs

def deps_ok(o, pending_before):
    rd, wr = set(o.rd), set(o.wr)
    for p in pending_before:
        if set(p.wr) & (rd | wr) or set(p.rd) & wr: return False
    return True

def force(P, pool, g):
    n = 0
    while True:
        idx = [j for j, o in enumerate(pool) if o.meta.get("before", 1 << 30) <= g]
        if not idx: return n
        last = idx[-1]
        need = set(idx)
        for j in range(last, -1, -1):
            if j in need:
                for i in range(j):
                    if i not in need and not deps_ok(pool[j], [pool[i]]): need.add(i)
        todo = sorted(need)
        pick = None
        for j in todo:
            if deps_ok(pool[j], pool[:j]) and not missing_states(P.ops, pool[j]): pick = j; break
        if pick is None: pick = todo[0]
        emit_safe(P, pool.pop(pick)); n += 1

def schedule(P, mf, fixed, pool, keyp=None, age=6, slots=2, stats=None, look=40, nxt=None):
    for g, m in enumerate(mf):
        nf = force(P, pool, g)
        if nf and stats is not None: stats.append(f"F{nf}")
        P.emit(waitreq(regs=m.rd, key=(keyp, g, "pre") if keyp is not None else None))
        ms = missing_states(P.ops, m)
        if ms: P.emit(nop(ms - 1))
        P.emit(m)
        free = slots; nsc = 0
        nx = mf[g + 1] if g + 1 < len(mf) else nxt
        if nx is not None:
            if P.emit(waitreq(regs=nx.rd, key=(keyp, g, "post") if keyp is not None else None, age=age)): nsc += 1
        for j, o in enumerate(fixed.get(g, [])):
            if o.kind == "waitreq":
                if o.key is None and keyp is not None: o.key = (keyp, g, "fx", j)
                if P.emit(o): nsc += 1
                continue
            ms = missing_states(P.ops, o)
            if ms: P.emit(nop(ms - 1)); nsc += 1
            P.emit(o)
            if o.kind in ("salu", "barrier", "wait", "nop"): nsc += 1
            elif o.kind == "branch": free = 0
            elif o.kind in ("label", "raw"): pass
            else: free -= o.cost
        if nsc > 1: free -= nsc - 1
        while free > 0:
            pick = None
            cands = []
            for j, o in enumerate(pool[:look]):
                if o.earliest > g or o.cost > free: continue
                if not deps_ok(o, pool[:j]): continue
                if missing_states(P.ops, o): continue
                cands.append(j)
            if not cands: break
            two = [j for j in cands if pool[j].cost == 2]
            pick = two[0] if (two and free == 2 and two[0] <= cands[0] + 12) else cands[0]
            o = pool.pop(pick); P.emit(o); free -= o.cost
        if stats is not None: stats.append(free)
```

```python
from fw import *

NS = 6
TILE = 12288
VBASE = 0
KBASE = NS * TILE
XBASE = KBASE + 2 * TILE
LDS1 = 163840
XR = 4
BAR = 54
NT = " nt"
THR = "0x42800000"
LOWTHR = "0x35800000"
SCALE = 0x3dd53b95
import struct, math, os
TPOL = os.environ.get('TPOL', '')
WPOL = os.environ.get('WPOL', '')
TOUCH = int(os.environ.get('TOUCH', '1'))
SCALE = struct.unpack("<I", struct.pack("<f", math.log2(math.e) / math.sqrt(192.0)))[0]

sX, sK, sV, sW, sO = 4, 8, 12, 16, 20
sWave, sKm0, sVm0, sKoff, sVoff, sWoff = 24, 25, 26, 27, 28, 29
sXq = 30
sLoop, sFloor, sPar, sScale = 34, 35, 36, 37
sRet = 38
sT = 40
sH, sB, sBH = sT + 10, sT + 11, sT + 12
sXm0 = 56
sPC = 58
vKb = 1
vVb = 5
vWb = 13
vKd = 17
vVd = 20
vWd = 23
vXo = 26
vXb = 28
vT = 32
vF = 26
vDummy = 30
vTx, vTw, vTd = 48, 49, 50
vStamp = 31
import os
STAMP = int(os.environ.get("STAMP", "0"))
def stamp(P, real=False):
    if not STAMP: return
    P.emit(raw(f"s_{'memrealtime' if real else 'memtime'} s[60:61]")); P.emit(wait(None, 0))
    P.emit(raw("s_mov_b32 m0, s62")); P.emit(raw("s_nop 0")); P.emit(raw(f"v_writelane_b32 v{vStamp}, s60, m0")); P.emit(raw("s_add_u32 s62, s62, 1"))
vS = 32
vQ = 64
vP = 160
vNeg = 192
vL = 208
vSum = 212
vE = 216
vC = 232
aRing = 192

def S(kt, qt): return vS + 16 * kt + 4 * qt
def Pq(par, qt): return vP + 16 * par + 4 * qt
def O(dt, qt): return (dt * 4 + qt) * 4
def wslot(t): return t % NS
def vslot(i): return (20 + i) % NS
def kslot(i): return i % NS

def srd(s): return f"s[{s}:{s+3}]"
def srdr(s): return R("s", s, 4)

def dma_tile(kind, idx):
    if kind == "K": sl, base, vd, sr, so, pol, adv = kslot(idx), sKm0, vKd, sK, sKoff, NT, TILE
    elif kind == "V": sl, base, vd, sr, so, pol, adv = vslot(idx), sVm0, vVd, sV, sVoff, NT, TILE
    else: sl, base, vd, sr, so, pol, adv = wslot(idx), sVm0, vWd, sW, sWoff, WPOL, 32 * 12288
    m0 = I(f"s_add_u32 m0, s{base}, {sl*TILE}")
    lo = (KBASE if kind == "K" else VBASE) + sl * TILE
    gran = tuple(range(lo // 4096, (lo + TILE) // 4096))
    ds = [dma(f"buffer_load_dwordx4 v{vd+i}, {srd(sr)}, s{so} offen offset:{1024*i}{pol} lds", [f"v{vd+i}", f"s{so}"] + srdr(sr), (kind, idx), gran) for i in range(3)]
    return m0, ds, I(f"s_add_u32 s{so}, s{so}, {adv}")

def xdma(j, qt):
    lo = XBASE + (j & 1) * 32768
    gran = tuple(range(lo // 4096, (lo + 32768) // 4096))
    m0 = I(f"s_add_u32 m0, s{sXm0}, {(j & 1) * 32768 + qt * 2048 - 128 * j + 2048}")
    return m0, [dma(f"buffer_load_dwordx4 v{vXo+p}, {srd(sX)}, s{sXq+qt} offen offset:{128*j+1024*p}{WPOL} lds", [f"v{vXo+p}", f"s{sXq+qt}"] + srdr(sX), ("x", j), gran) for p in range(2)]

def xread(t, qt):
    a = (t % XR) * 16 + 4 * qt; j = t >> 1; b = vXb + (t & 1)
    return ds_read(f"ds_read_b128 a[{a}:{a+3}], v{b} offset:{(j & 1) * 32768 + qt * 2048}", R("a", a, 4), f"v{b}", ("x", j), ("x", t, qt))

def touch_code():
    return vload(f"global_load_dword v{vDummy}, v{vDummy+0}, s[{sPC}:{sPC+1}]", [f"v{vDummy}"], [f"v{vDummy}", f"s{sPC}", f"s{sPC+1}"])

def frag_reads(kind, idx, f, slot):
    a = aRing + 4 * slot
    tag = (kind, idx, f)
    if kind == "K":
        kt, ds = f; sl = kslot(idx)
        off = (sl % 3) * TILE + kt * 6144 + 128 * (ds >> 1); b = vKb + (sl // 3) * 2 + (ds & 1)
        return [ds_read(f"ds_read_b128 a[{a}:{a+3}], v{b} offset:{off}", R("a", a, 4), f"v{b}", (kind, idx), tag)]
    if kind == "W" and os.environ.get("WNOCONF"):
        sl = wslot(idx); b = vVb + (sl // 3) * 4 + (f & 3); o0 = (sl % 3) * TILE + 128 * (f >> 2)
    elif kind == "V":
        sl = vslot(idx); b = vVb + (sl // 3) * 4 + (f & 3); o0 = (sl % 3) * TILE + 128 * (f >> 2)
    else:
        sl = wslot(idx); ds = f >> 1; b = vWb + (sl // 3) * 2 + (ds & 1); o0 = (sl % 3) * TILE + 128 * (ds >> 1) + 8 * (f & 1)
    return [ds_read(f"ds_read_b64_tr_b16 a[{a+2*s}:{a+2*s+1}], v{b} offset:{o0+6144*s}", R("a", a + 2 * s, 2), f"v{b}", (kind, idx), tag) for s in range(2)]

def unit(t, kt, qt, eset, earliest, direct=False, before=None):
    par = t & 1; e = vE + 4 * eset; s = S(kt, qt); ops = []
    et = ("e", t, kt, qt)
    for r in range(4):
        o = I(f"v_exp_f32 v{e+r}, v{s+r}", rtag=[([f"v{s+r}"], ("S", t))], wtag=et, earliest=earliest)
        if before is not None: o.meta["before"] = before
        ops.append(o)
    acc = (vL if direct else vSum) + qt
    def add(d, a, b): return I(f"v_add_f32 v{d}, v{a}, v{b}", rtag=[([f"v{b}"], et)], earliest=earliest)
    order = []
    if kt == 0: order += [add(acc, e, e + 1)]
    else: order += [add(acc, acc, e), add(acc, acc, e + 1)]
    p = Pq(par, qt) + 2 * kt
    order.append(I(f"v_cvt_pk_bf16_f32 v{p}, v{e}, v{e+1}", rtag=[([f"v{e}", f"v{e+1}"], et)], wtag=("P", t), earliest=earliest))
    order += [add(acc, acc, e + 2), add(acc, acc, e + 3)]
    order.append(I(f"v_cvt_pk_bf16_f32 v{p+1}, v{e+2}, v{e+3}", rtag=[([f"v{e+2}", f"v{e+3}"], et)], wtag=("P", t), earliest=earliest))
    return ops + order

def check_ops(t, earliest, first=False):
    a, b = S(1, 2), S(1, 3); c = vC
    tg = lambda rs: [([f"v{r}" for r in rs], ("S", t))]
    ops = [I(f"v_max3_f32 v{c}, v{a}, v{a+1}, v{a+2}", rtag=tg([a, a+1, a+2]), earliest=earliest),
           I(f"v_max3_f32 v{c+1}, v{a+3}, v{b}, v{b+1}", rtag=tg([a+3, b, b+1]), earliest=earliest),
           I(f"v_max3_f32 v{c}, v{c}, v{b+2}, v{b+3}", rtag=tg([b+2, b+3]), earliest=earliest),
           I(f"v_max3_f32 v{c+1}, v{c+1}, v{vSum+2}, v{vSum+3}", earliest=earliest),
           I(f"v_max3_f32 v{c}, v{c}, v{c+1}, v{vSum}", earliest=earliest),
           I(f"v_max_f32 v{c}, v{c}, v{vSum+1}", earliest=earliest),
           I(f"v_cmp_lt_f32 vcc, {THR}, v{c}", earliest=earliest)]
    return ops

def carry_ops(t, base, before=None):
    ops = []
    u2 = unit(t, 1, 2, 2, base, direct=True, before=None if before is None else before + 2)
    u3 = unit(t, 1, 3, 3, base, direct=True, before=None if before is None else before + 3)
    la = [I(f"v_add_f32 v{vL+q}, v{vL+q}, v{vSum+q}", earliest=base) for q in range(4)]
    return la + u2 + u3

def tile_ops(t, fin0, fin1):
    ops = []
    for qt in range(4): ops += unit(t, 0, qt, qt, fin0(qt))
    for qt in range(2): ops += unit(t, 1, qt, qt, fin1(qt))
    return ops

class Frags:
    def __init__(self): self.q = []; self.free_after = {}
    def add(self, kind, idx, f, slot, after):
        for o in frag_reads(kind, idx, f, slot): self.q.append((o, after))
    def place(self, fixed, g0, n, reserved):
        for g in range(n):
            if g in reserved or not self.q: continue
            o, after = self.q[0]
            if g0 + g >= after: fixed.setdefault(g, []).append(o); self.q.pop(0)

def put_dmas(fixed, reserved, tiles, g, stride=2, extra=()):
    for kind, idx in tiles:
        m0, ds, adv = dma_tile(kind, idx)
        fixed.setdefault(g - 1, []).insert(0, m0)
        for d in ds:
            fixed.setdefault(g, []).append(d); reserved.add(g); g += stride
        fixed.setdefault(g - stride + 1, []).insert(0, adv)
        g += 1
    return g

def setup(P):
    e = lambda t: emit_safe(P, I(t))
    P.emit(raw("s_cmp_ge_u32 s2, 256")); P.emit(raw("s_cbranch_scc1 L1_end"))
    P.emit(raw(f"s_load_dwordx8 s[{sT}:{sT+7}], s[0:1], 0")); P.emit(raw(f"s_load_dwordx2 s[{sT+8}:{sT+9}], s[0:1], 56"))
    if STAMP:
        P.emit(raw("s_mov_b32 s62, 0")); stamp(P, True); stamp(P)
    e(f"v_lshrrev_b32 v{vT}, 6, v0"); e(f"v_lshlrev_b32 v{vDummy}, 2, v0"); e(f"v_and_b32 v0, 63, v0"); e(f"v_readfirstlane_b32 s{sWave}, v{vT}")
    e(f"s_and_b32 s{sH}, s2, 7"); e(f"s_lshr_b32 s{sB}, s2, 3"); e(f"s_lshl_b32 s{sH}, s{sH}, 2")
    P.emit(raw(f"s_getpc_b64 s[{sPC}:{sPC+1}]"))
    e(f"v_lshl_add_u32 v{vDummy}, s{sB}, 10, v{vDummy}"); emit_safe(P, touch_code())
    e(f"s_and_b32 s{sBH}, s{sB}, 3"); e(f"s_add_u32 s{sH}, s{sH}, s{sBH}"); e(f"s_lshr_b32 s{sB}, s{sB}, 2")
    t0, t2, t3 = vT, vT + 2, vT + 3
    e(f"s_mul_i32 s{sVm0}, s{sWave}, 3072")
    e(f"s_lshl_b32 s{sXm0}, s{sWave}, 13"); e(f"s_add_u32 s{sXm0}, s{sXm0}, {XBASE - 2048}")
    e(f"s_lshl_b32 s{sT+13}, s{sWave}, 3")
    for i in range(3):
        t1 = vT + 8 + i
        e(f"v_add_u32 v{t0}, {64*i}, v0"); e(f"v_mul_u32_u24 v{t1}, 2731, v{t0}"); e(f"v_lshrrev_b32 v{t1}, 16, v{t1}")
        e(f"v_mul_u32_u24 v{t2}, 24, v{t1}"); e(f"v_sub_u32 v{t0}, v{t0}, v{t2}")
        e(f"v_add_u32 v{t1}, s{sT+13}, v{t1}")
        e(f"v_and_b32 v{t2}, 6, v{t1}"); e(f"v_xor_b32 v{t0}, v{t0}, v{t2}"); e(f"v_lshlrev_b32 v{t0}, 4, v{t0}")
        e(f"v_and_b32 v{t3}, 12, v{t1}"); e(f"v_lshlrev_b32 v{t3}, 1, v{t3}"); e(f"v_and_or_b32 v{t3}, v{t1}, 3, v{t3}")
        e(f"v_lshrrev_b32 v{vWd+i}, 4, v{t1}"); e(f"v_lshl_add_u32 v{t3}, v{vWd+i}, 2, v{t3}")
        e(f"v_mul_u32_u24 v{t3}, 12288, v{t3}"); e(f"v_add_u32 v{t3}, v{t3}, v{t0}"); e(f"v_subrev_u32 v{vWd+i}, {1024*i}, v{t3}")
    t1 = vT + 1
    e(f"v_lshrrev_b32 v{t0}, 3, v0"); e(f"s_lshl_b32 s{sT+13}, s{sWave}, 6"); e(f"v_add_u32 v{t0}, s{sT+13}, v{t0}")
    e(f"v_mul_u32_u24 v{t0}, 1280, v{t0}"); e(f"v_lshrrev_b32 v{t1}, 4, v0"); e(f"v_and_b32 v{t2}, 7, v0"); e(f"v_xor_b32 v{t1}, v{t1}, v{t2}")
    e(f"v_lshl_add_u32 v{vXo}, v{t1}, 4, v{t0}"); e(f"v_xor_b32 v{t1}, 4, v{t1}"); e(f"v_lshl_add_u32 v{vXo+1}, v{t1}, 4, v{t0}")
    e(f"v_add_u32 v{vXo+1}, {8*1280-1024}, v{vXo+1}")
    for q in range(4): e(f"s_mov_b32 s{sXq+q}, {20480*q}")
    e(f"s_mov_b32 s{sWoff}, 0")
    e(f"s_mul_i32 s{sT+13}, s{sH}, 384"); e(f"s_mul_i32 s{sT+14}, s{sB}, 307200")
    e(f"s_sub_u32 s{sW+2}, {640*12288}, s{sT+13}"); e(f"s_mov_b32 s{sW+3}, 0x20000")
    e(f"s_mov_b32 s{sX+2}, 307200"); e(f"s_mov_b32 s{sX+3}, 0x20000")
    P.emit(raw("s_waitcnt lgkmcnt(0)"))
    sbase(P, sW, sT + 6, sT + 13); sbase(P, sX, sT, sT + 14)

def sbase(P, s, ptr, offs):
    emit_safe(P, [I(f"s_add_u32 s{s}, s{ptr}, s{offs}"), I(f"s_addc_u32 s{s+1}, s{ptr+1}, 0")])

def touch_setup(P):
    e = lambda t: emit_safe(P, I(t))
    t0, t1 = vT, vT + 1
    e(f"s_mul_i32 s{sT+13}, s{sBH}, 60"); e(f"v_add_u32 v{t0}, s{sT+13}, v0"); e(f"v_mul_u32_u24 v{t0}, 1280, v{t0}")
    e(f"v_lshl_add_u32 v{vTx}, s{sWave}, 7, v{t0}")
    e(f"v_lshrrev_b32 v{t0}, 5, v0"); e(f"v_lshlrev_b32 v{t0}, 6, v{t0}"); e(f"v_bfe_u32 v{t1}, v0, 2, 3"); e(f"v_add_u32 v{t0}, v{t0}, v{t1}")
    e(f"s_lshl_b32 s{sT+13}, s{sWave}, 7"); e(f"s_lshl_b32 s{sT+14}, s{sB}, 3"); e(f"s_add_u32 s{sT+13}, s{sT+13}, s{sT+14}"); e(f"s_add_u32 s{sT+13}, s{sT+13}, 128")
    e(f"v_add_u32 v{t0}, s{sT+13}, v{t0}"); e(f"v_mul_u32_u24 v{t0}, 12288, v{t0}")
    e(f"v_and_b32 v{t1}, 3, v0"); e(f"v_min_u32 v{t1}, 2, v{t1}"); e(f"v_lshl_add_u32 v{vTw}, v{t1}, 7, v{t0}")
def touch_x(r): return vload(f"buffer_load_dword v{vTd+r}, v{vTx}, {srd(sX)}, 0 offen offset:{256+512*r}{TPOL}", [f"v{vTd+r}"], [f"v{vTx}"] + srdr(sX))
def touch_w(): return vload(f"buffer_load_dword v{vTd+2}, v{vTw}, {srd(sW)}, 0 offen{TPOL}", [f"v{vTd+2}"], [f"v{vTw}"] + srdr(sW))

def setup2(P):
    e = lambda t: emit_safe(P, I(t))
    t0, t1, t2, t3, t4 = vT, vT + 1, vT + 2, vT + 3, vT + 4
    e(f"s_add_u32 s{sKm0}, s{sVm0}, {KBASE}")
    for i in range(3):
        r = vT + 8 + i
        e(f"v_and_b32 v{t2}, 6, v{r}"); e(f"v_xor_b32 v{t2}, v0, v{t2}"); e(f"v_lshlrev_b32 v{t2}, 4, v{t2}"); e(f"v_add_u32 v{vVd+i}, s{sVm0}, v{t2}")
        e(f"v_bfe_u32 v{t2}, v{r}, 1, 3"); e(f"v_xor_b32 v{t2}, v0, v{t2}"); e(f"v_lshlrev_b32 v{t2}, 4, v{t2}"); e(f"v_add_u32 v{vKd+i}, s{sVm0}, v{t2}")
    e(f"s_mov_b32 s{sKoff}, 0"); e(f"s_mov_b32 s{sVoff}, 0")
    e(f"s_lshl_b32 s{sBH}, s{sB}, 5"); e(f"s_add_u32 s{sBH}, s{sBH}, s{sH}")
    e(f"s_mul_i32 s{sT+13}, s{sBH}, 393216")
    sbase(P, sK, sT + 2, sT + 13); e(f"s_mov_b32 s{sK+2}, 393216"); e(f"s_mov_b32 s{sK+3}, 0x20000")
    sbase(P, sV, sT + 4, sT + 13); e(f"s_mov_b32 s{sV+2}, 393216"); e(f"s_mov_b32 s{sV+3}, 0x20000")
    e(f"s_mul_i32 s{sT+13}, s{sBH}, 92160"); sbase(P, sO, sT + 8, sT + 13); e(f"s_mov_b32 s{sO+2}, 92160"); e(f"s_mov_b32 s{sO+3}, 0x20000")
    e(f"v_and_b32 v{t0}, 15, v0"); e(f"v_lshrrev_b32 v{t1}, 4, v0"); e(f"v_lshrrev_b32 v{t2}, 1, v{t0}")
    e(f"v_xor_b32 v{t2}, v{t1}, v{t2}")
    e(f"v_lshlrev_b32 v{t3}, 7, v{t0}"); e(f"v_lshl_add_u32 v{t3}, v{t2}, 4, v{t3}"); e(f"v_add_u32 v{t3}, s{sXm0}, v{t3}")
    e(f"v_add_u32 v{vXb}, 2048, v{t3}"); e(f"v_xor_b32 v{vXb+1}, 64, v{vXb}")
    e(f"v_mul_u32_u24 v{t0}, 384, v{t0}"); e(f"v_add_u32 v{t0}, {KBASE}, v{t0}")
    e(f"v_lshl_add_u32 v{vKb}, v{t2}, 4, v{t0}"); e(f"v_xor_b32 v{vKb+1}, 64, v{vKb}")
    for p in range(2): e(f"v_add_u32 v{vKb+2+p}, {3*TILE}, v{vKb+p}")
    e(f"v_lshrrev_b32 v{t0}, 2, v0"); e(f"v_and_b32 v{t1}, 3, v0"); e(f"v_bfe_u32 v{t2}, v0, 3, 2")
    e(f"v_mul_u32_u24 v{t0}, 384, v{t0}")
    if VBASE: e(f"v_add_u32 v{t0}, {VBASE}, v{t0}")
    e(f"v_lshl_add_u32 v{t3}, v{t1}, 3, v{t0}")
    for b in range(4):
        e(f"v_xor_b32 v{t4}, {b}, v{t2}"); e(f"v_lshl_add_u32 v{vVb+b}, v{t4}, 5, v{t3}"); e(f"v_add_u32 v{vVb+4+b}, {3*TILE}, v{vVb+b}")
    e(f"v_lshlrev_b32 v{t2}, 1, v{t2}"); e(f"v_xor_b32 v{t1}, v{t1}, v{t2}")
    e(f"v_lshl_add_u32 v{vWb}, v{t1}, 4, v{t0}"); e(f"v_xor_b32 v{t1}, 4, v{t1}"); e(f"v_lshl_add_u32 v{vWb+1}, v{t1}, 4, v{t0}")
    for p in range(2): e(f"v_add_u32 v{vWb+2+p}, {3*TILE}, v{vWb+p}")
    e(f"s_mov_b32 s{sScale}, 0x{SCALE:08x}"); e(f"s_mov_b32 s{sFloor}, 0xff7fffff"); e(f"s_mov_b32 s{sLoop}, 5")

def conv_ops(k, earliest, before):
    a = vQ + 8 * k; q = vQ + 4 * k; ops = []
    for r in range(8): ops.append(I(f"v_mul_f32 v{a+r}, s{sScale}, v{a+r}", rtag=[([f"v{a+r}"], ("acc", 19))], wtag=("accs",), earliest=earliest))
    for r in range(4): ops.append(I(f"v_cvt_pk_bf16_f32 v{q+r}, v{a+2*r}, v{a+2*r+1}", rtag=[([f"v{a+2*r}", f"v{a+2*r+1}"], ("accs",))], wtag=("Q", k), earliest=earliest))
    for o in ops: o.meta["before"] = before
    return ops

def qk_mfma(t, kt, ds, qt, slot, first_c):
    s = S(kt, qt); a = aRing + 4 * slot; q = vQ + 4 * (ds * 4 + qt)
    rt = [(R("a", a, 4), ("K", t, (kt, ds))), (R("v", q, 4), ("Q", ds * 4 + qt))]
    if ds: rt.append((R("v", s, 4), ("Sp", t, ds - 1)))
    c = first_c if ds == 0 else ("v", s)
    return mfma(("v", s), ("a", a), ("v", q), c, rtag=rt, wtag=("S", t) if ds == 5 else ("Sp", t, ds))

def pv_mfma(t, dt, qt, slot):
    a = aRing + 4 * slot; p = Pq(t & 1, qt); o = O(dt, qt)
    rt = [(R("a", a, 4), ("V", t, dt)), (R("v", p, 4), ("P", t))]
    if t: rt.append((R("a", o, 4), ("O", t - 1)))
    return mfma(("a", o), ("a", a), ("v", p), ("a", o) if t else None, rtag=rt, wtag=("O", t))

def branch(text): return Op(text, "branch", ["vcc"])

def build(waittab=None, stats=None):
    P = Prog(waittab)
    marks = {}
    setup(P)
    def now(kind, idx):
        if kind == "x":
            for qt in range(4):
                m0, ds = xdma(idx, qt); emit_safe(P, [m0] + ds)
        else:
            m0, ds, adv = dma_tile(kind, idx); emit_safe(P, [m0] + ds + [adv])
    now("W", 0); now("x", 0); now("W", 1)
    touch_setup(P)
    setup2(P)
    now("x", 1); now("W", 2); now("W", 3)
    if TOUCH: emit_safe(P, [touch_x(0), touch_w()])
    P.emit(waitreq(tiles=[("W", 0), ("W", 1), ("x", 0)])); P.emit(barrier([("W", 0), ("W", 1)]))
    for t in range(2):
        for qt in range(4): P.emit(xread(t, qt))
    stamp(P)
    F = Frags()
    phases = []
    def acc(dt, qt): return vQ + 8 * ((dt >> 1) * 4 + qt) + 4 * (dt & 1)
    for j in range(10):
        mf = []; fr = []
        order = [(2 * j + u, dt) for u in range(2) for dt in range(12)] if j < 9 else [(18 + u, dt) for dt in range(12) for u in range(2)]
        for n, (t, dt) in enumerate(order):
            sl = n % 12
            fr.append(("W", t, dt, sl, 4 * n, 4 * n + 3))
            for qt in range(4):
                xa = (t % XR) * 16 + 4 * qt; c = acc(dt, qt)
                rt = [(R("a", aRing + 4 * sl, 4), ("W", t, dt)), (R("a", xa, 4), ("x", t, qt))]
                if t: rt.append((R("v", c, 4), ("acc", t - 1)))
                mf.append(mfma(("v", c), ("a", aRing + 4 * sl), ("a", xa), ("v", c) if t else None, rtag=rt, wtag=("acc", t)))
        phases.append((("Q", j), mf, fr))
    mf = []; fr = []
    for ds in range(6):
        for kt in range(2): fr.append(("K", 0, (kt, ds), 2 * ds + kt, 8 * ds + kt, 8 * ds + 7))
        for qt in range(4):
            for kt in range(2): mf.append(qk_mfma(0, kt, ds, qt, 2 * ds + kt, None))
    phases.append((("QK0",), mf, fr))
    for i in range(31):
        mf = []; fr = []
        for kt in range(2):
            for ds in range(6):
                n = kt * 6 + ds; fr.append(("K", i + 1, (kt, ds), n, 4 * n, 4 * n + 3))
                for qt in range(4): mf.append(qk_mfma(i + 1, kt, ds, qt, n, ("v", vNeg + 4 * qt)))
        for dt in range(12):
            fr.append(("V", i, dt, dt, 48 + 4 * dt, 51 + 4 * dt))
            for qt in range(4): mf.append(pv_mfma(i, dt, qt, dt))
        phases.append((("S", i), mf, fr))
    phases.append((("dummy",), [], [("K", 32, (n // 6, n % 6), n, 0, 0) for n in range(11)]))
    starts = []; g = 0
    for ph in phases: starts.append(g); g += len(ph[1])
    last_use = {}; lastbar = -1
    for pi, (name, mf, fr) in enumerate(phases):
        for kind, idx, f, sl, fu, lu in fr:
            F.add(kind, idx, f, sl, max(last_use.get(sl, -1), lastbar + 1))
            last_use[sl] = starts[pi] + lu
        if name[0] in ("Q", "S"): lastbar = starts[pi] + BAR
    for _ in range(16): P.emit(F.q.pop(0)[0])
    pool = []
    for pi, (name, mf, fr) in enumerate(phases[:-1]):
        fixed = {}; res = set(); st = [] if stats is not None else None
        keyp = None
        nxt = phases[pi + 1][1][0] if phases[pi + 1][1] else None
        if name[0] == "Q":
            j = name[1]
            need = [("W", 2 * j + 2), ("W", 2 * j + 3)] if j < 9 else [("K", 0), ("K", 1), ("V", 0)]
            fixed[BAR - 1] = [waitreq(tiles=need, lds_all=True)]; fixed[BAR] = [barrier(need)]; res |= {BAR - 3, BAR - 2, BAR - 1, BAR}
            tl = [("W", t) if t < 20 else ("V", t - 20) for t in (2 * j + 6, 2 * j + 7)]
            g = 2
            if j + 2 < 10:
                fixed.setdefault(g - 1, []).append(waitreq(rtiles=[("x", j)]))
                for qt in range(4):
                    m0, ds = xdma(j + 2, qt)
                    fixed.setdefault(g, []).insert(0, m0); g += 1
                    for d in ds: fixed.setdefault(g, []).append(d); res.add(g); g += 3
                    g -= 1
            early = {0: [("W", 4), ("W", 5)], 1: [("K", 0)], 2: [("K", 1)]}.get(j, [])
            g = put_dmas(fixed, res, early, g + 2, stride=3)
            if j == 1 and TOUCH: fixed.setdefault(g, []).append(touch_x(1)); res.add(g)
            late = {8: [("K", 2), ("K", 3)], 9: [("K", 4), ("K", 5)]}.get(j, [])
            put_dmas(fixed, res, tl + late, BAR + 3, stride=4 if not late else 3)
            if j + 1 < 10:
                g = BAR + 6
                first = True
                for t in (2 * j + 2, 2 * j + 3):
                    for qt in range(4):
                        while g in res: g += 1
                        if first: fixed.setdefault(g, []).insert(0, waitreq(tiles=[("x", j + 1)])); first = False
                        fixed.setdefault(g, []).append(xread(t, qt)); res.add(g); g += 4
            if j == 9:
                for k in range(24):
                    ds, qt = divmod(k, 4)
                    pool += conv_ops(k, 16 * ds + 12 + qt, 96 + 8 * ds + 2 * qt)
        elif name[0] == "QK0":
            for o in pool: o.earliest = 0; o.meta["before"] -= 96
            init = [I(f"v_mov_b32 v{vNeg+r}, 0") for r in range(16)] + [I(f"v_mov_b32 v{vL+r}, 0") for r in range(4)]
            pool += init
        else:
            i = name[1]
            if i >= 1: keyp = ("L", (i - 1) % 6)
            need = [("K", i + 2), ("V", i + 1)]
            fixed[BAR - 1] = [waitreq(tiles=need, lds_all=True)]; fixed[BAR] = [barrier(need)]; res |= {BAR - 3, BAR - 2, BAR - 1, BAR, 95}
            tl = ([("K", 6)] if i == 0 else []) + [("K", i + 7), ("V", i + 6)]
            put_dmas(fixed, res, tl, BAR + 4, stride=4 if i else 3)
            pool += carry_ops(i, 0, before=24)
            pool += tile_ops(i + 1, lambda q: 20 + q, lambda q: 44 + q)
            pool += check_ops(i + 1, 47)
            for o in pool: o.meta.setdefault("before", 95)
            fixed.setdefault(93, []).insert(0, waitreq(regs=R("a", aRing, 4), age=5))
            lab = "p" if i == 0 else str((i - 1) % 6)
            fixed[95] = [branch(f"s_cbranch_vccnz L1_stub{lab}"), label(f"L1_back{lab}")]
            if i >= 1 and (i - 1) % 6 == 5:
                fixed.setdefault(90, []).insert(0, I(f"s_sub_u32 s{sLoop}, s{sLoop}, 1"))
                fixed[95] += [I(f"s_cmp_lg_u32 s{sLoop}, 0"), Op("s_cbranch_scc1 L1_loop", "branch", ["scc"])]
        F.place(fixed, starts[pi], len(mf), res)
        marks[name] = len(P.ops)
        if name[0] != "Q" or name[1] >= 1: stamp(P)
        schedule(P, mf, fixed, pool, keyp=keyp, stats=st, nxt=nxt)
        if stats is not None: stats[name] = st
        if name[0] == "QK0":
            pool += tile_ops(0, lambda q: 0, lambda q: 0) + check_ops(0, 0)
            pool += [I(f"v_min3_f32 v{vC+2}, v{vSum}, v{vSum+1}, v{vSum+2}"), I(f"v_min_f32 v{vC+2}, v{vC+2}, v{vSum+3}"),
                     I(f"v_mov_b32 v{vC+3}, {LOWTHR}"), I(f"v_cmp_nge_f32 s[{sT}:{sT+1}], v{vC+2}, v{vC+3}")]
            for o in pool: o.meta["before"] = 0
            force(P, pool, 0)
            emit_safe(P, [nop(1), I(f"s_or_b64 vcc, vcc, s[{sT}:{sT+1}]")])
            P.emit(branch("s_cbranch_vccnz L1_stubf")); P.emit(label("L1_backf"))
            emit_safe(P, I(f"s_mov_b32 s{sFloor}, 0"))
        assert name[0] == "Q" or not pool, (name, pool)
    assert not F.q, F.q
    marks["fin"] = len(P.ops)
    stamp(P)
    final(P, stats)
    stamp(P)
    if STAMP:
        P.emit(wait(0, None)); stamp(P); stamp(P, True)
        P.emit(raw(f"s_load_dwordx2 s[60:61], s[0:1], 56")); P.emit(wait(None, 0))
        P.emit(raw(f"s_add_u32 s60, s60, 0x10000000")); P.emit(raw("s_addc_u32 s61, s61, 0"))
        P.emit(raw(f"s_lshl_b32 s62, s2, 2")); P.emit(raw(f"s_add_u32 s62, s62, s{sWave}")); P.emit(raw("s_lshl_b32 s62, s62, 8"))
        P.emit(raw(f"v_lshlrev_b32 v30, 2, v0")); P.emit(raw("v_add_u32 v30, s62, v30"))
        P.emit(raw(f"global_store_dword v30, v{vStamp}, s[60:61]"))
    marks["end"] = len(P.ops)
    return P, marks

def final(P, stats):
    e = lambda t, **k: emit_safe(P, I(t, **k))
    t = 31
    F = Frags()
    for dt in range(12): F.add("V", t, dt, dt, 0)
    P.emit(waitreq(lds_all=True))
    for _ in range(8): P.emit(F.q.pop(0)[0])
    pool = carry_ops(t, 0)
    for o in pool: o.meta["before"] = 0
    vO0, vO3 = vF, vF + 1
    pool += [I(f"v_lshlrev_b32 v{vO0}, 4, v0"), I(f"v_lshl_add_u32 v{vO0}, s{sWave}, 12, v{vO0}")]
    pool += [I(f"v_add_u32 v{vO3}, s{sT}, v{vO0}")]
    e(f"s_cmp_eq_u32 s{sWave}, 3"); e(f"s_cselect_b32 s{sT}, 0x40000000, 0")
    for q in range(4):
        l = vL + q; c = vC + q
        pool += [I(f"v_mov_b32 v{c}, v{l}"), I(f"v_permlane32_swap_b32 v{l}, v{c}"), I(f"v_add_f32 v{l}, v{l}, v{c}"),
                 I(f"v_mov_b32 v{c}, v{l}"), I(f"v_permlane16_swap_b32 v{l}, v{c}"), I(f"v_add_f32 v{l}, v{l}, v{c}"),
                 I(f"v_rcp_f32 v{l}, v{l}")]
    mf = [pv_mfma(t, dt, qt, dt) for dt in range(12) for qt in range(4)]
    n = 0
    for ds in range(6):
        e(f"s_mov_b32 s{sT+2+ds}, {ds*15360}")
    for ds in range(6):
        for qt in range(4):
            tb = vQ + 12 * (n % 8); n += 1
            ea = 8 * ds + 4 + qt
            for r in range(8):
                a = O(2 * ds + (r >> 2), qt) + (r & 3)
                pool.append(I(f"v_accvgpr_read_b32 v{tb+r}, a{a}", rtag=[([f"a{a}"], ("O", t))], earliest=ea))
            for r in range(8): pool.append(I(f"v_mul_f32 v{tb+r}, v{vL+qt}, v{tb+r}", earliest=ea))
            for r in range(4): pool.append(I(f"v_cvt_pk_bf16_f32 v{tb+8+r}, v{tb+2*r}, v{tb+2*r+1}", earliest=ea))
            vo = vO3 if qt == 3 else vO0
            pool.append(vstore(f"buffer_store_dwordx4 v[{tb+8}:{tb+11}], v{vo}, {srd(sO)}, s{sT+2+ds} offen offset:{1024*qt} sc0 sc1", R("v", tb + 8, 4), [f"v{vo}", f"s{sT+2+ds}"] + srdr(sO)))
            pool[-1].earliest = ea
    fixed = {}
    F.place(fixed, 0, 48, set())
    st = [] if stats is not None else None
    schedule(P, mf, fixed, pool, stats=st)
    if stats is not None: stats["fin"] = st
    for o in pool: o.meta["before"] = 0
    force(P, pool, 0)

def rare():
    P = Prog(); e = lambda t: emit_safe(P, I(t))
    P.emit(label("L1_rare")); P.emit(nop(7)); P.emit(nop(7))
    c = vC
    for qt in range(4):
        a, b = S(0, qt), S(1, qt)
        e(f"v_max3_f32 v{c}, v{a}, v{a+1}, v{a+2}"); e(f"v_max3_f32 v{c}, v{c}, v{a+3}, v{b}"); e(f"v_max3_f32 v{c}, v{c}, v{b+1}, v{b+2}"); e(f"v_max_f32 v{c}, v{c}, v{b+3}")
        for sw in ("32", "16"):
            e(f"v_mov_b32 v{c+1}, v{c}"); e(f"v_permlane{sw}_swap_b32 v{c}, v{c+1}"); e(f"v_max_f32 v{c}, v{c}, v{c+1}")
        e(f"v_max_f32 v{c}, s{sFloor}, v{c}")
        e(f"v_max_f32 v{c+1}, 0, v{c}"); e(f"v_exp_f32 v{c+1}, -v{c+1}")
        for r in range(4):
            e(f"v_sub_f32 v{vNeg+4*qt+r}, v{vNeg+4*qt+r}, v{c}"); e(f"v_sub_f32 v{a+r}, v{a+r}, v{c}"); e(f"v_sub_f32 v{b+r}, v{b+r}, v{c}")
        e(f"v_mul_f32 v{vL+qt}, v{vL+qt}, v{c+1}")
        for dt in range(12):
            o = O(dt, qt)
            for r in range(4): e(f"v_accvgpr_read_b32 v{c+2+r}, a{o+r}")
            for r in range(4): e(f"v_mul_f32 v{c+2+r}, v{c+2+r}, v{c+1}")
            for r in range(4): e(f"v_accvgpr_write_b32 a{o+r}, v{c+2+r}")
    P.emit(raw(f"s_cmp_eq_u32 s{sPar}, 1")); P.emit(raw("s_cbranch_scc1 L1_rare1"))
    for par in range(2):
        if par: P.emit(label("L1_rare1"))
        for o in tile_ops(par, lambda q: 0, lambda q: 0):
            o.rtag = []; emit_safe(P, o)
        P.emit(nop(3)); P.emit(raw(f"s_setpc_b64 s[{sRet}:{sRet+1}]"))
    out = [o.text for o in P.ops]
    for lab, par in [("f", 0), ("p", 1)] + [(str(u), (u + 2) & 1) for u in range(6)]:
        out += [f"L1_stub{lab}:", f"s_mov_b32 s{sPar}, {par}", f"s_call_b64 s[{sRet}:{sRet+1}], L1_rare", f"s_branch L1_back{lab}"]
    return out

def gen(verbose=False):
    P, marks = build()
    stats = {}
    P, marks = build(P.waitseen, stats)
    errs = check(P.ops, private=("x",))
    for x in errs[:40]: print("ERR", x)
    assert not errs
    T = [o.text for o in P.ops]
    body = T[marks[("S", 1)]:marks[("S", 7)]]
    for it in range(1, 5):
        hi = marks[("S", 7 + 6 * it)] if it < 4 else marks["fin"]
        other = T[marks[("S", 1 + 6 * it)]:hi]
        if other != body:
            for a, b in zip(body, other):
                if a != b: print("DIFF", it, a, "|", b); break
            raise SystemExit("loop not periodic")
    if verbose:
        for k, v in stats.items(): print(k, "".join(str(x) for x in v))
    out = T[:marks[("S", 1)]] + ["L1_loop:"] + body + T[marks["fin"]:] + ["L1_end:", "s_endpgm"] + rare()
    return out

if __name__ == "__main__":
    o = gen(True)
    print(len(o))
```

```python
from fw import *
import os
DT = 20480
NS2 = 8
LDS2 = NS2 * DT
PBASE = 256 * 92160
PSZ = 76800
G3 = 600
BR = 8
BAR2 = 44
STAMP = int(os.environ.get("STAMP", "0"))
sO, sW, sP = 4, 8, 12
sWave, sM0, sWoff, sBoff = 24, 25, 26, 27
sT = 40
vWd = 1
vA = 6
vBo = 10
vPo = 11
vT = 32
vAcc = 64
aRing = 192; NR = 16
def srd(s): return f"s[{s}:{s+3}]"
def srdr(s): return R("s", s, 4)
def acc(nt, qt): return vAcc + 8 * ((nt >> 1) * 4 + qt) + 4 * (nt & 1)

def wdma(j):
    sl = j % NS2
    gran = tuple(range(sl * DT // 4096, (sl + 1) * DT // 4096))
    m0 = I(f"s_add_u32 m0, s{sM0}, {sl*DT}")
    m1 = I(f"s_add_u32 m0, s{sM0}, {sl*DT+4096}")
    ds = [dma(f"buffer_load_dwordx4 v{vWd+i}, {srd(sW)}, s{sWoff} offen offset:{1024*(i&3)} lds", [f"v{vWd+i}", f"s{sWoff}"] + srdr(sW), ("W", j), gran) for i in range(5)]
    return m0, m1, ds, I(f"s_add_u32 s{sWoff}, s{sWoff}, {64*1280}")
def bload(ks, qt):
    a = (ks % BR) * 16 + 4 * qt
    return vload(f"buffer_load_dwordx4 a[{a}:{a+3}], v{vBo}, {srd(sO)}, s{sBoff} offen offset:{1024*qt}", R("a", a, 4), [f"v{vBo}", f"s{sBoff}"] + srdr(sO), wtag=("B", ks, qt))
def badv(): return I(f"s_add_u32 s{sBoff}, s{sBoff}, 15360")
def areads(ks, nt, slot):
    j = ks >> 1; sl = j % NS2; a = aRing + 4 * slot; b = vA + sl // 2
    o0 = (sl & 1) * DT + (ks & 1) * 10240 + 64 * (nt >> 1) + 8 * (nt & 1)
    return [ds_read(f"ds_read_b64_tr_b16 a[{a+2*s}:{a+2*s+1}], v{b} offset:{o0+5120*s}", R("a", a + 2 * s, 2), f"v{b}", ("W", j), ("A", ks, nt)) for s in range(2)]

def build(waittab=None, stats=None):
    P = Prog(waittab)
    e = lambda t: emit_safe(P, I(t))
    P.emit(raw("s_cmp_ge_u32 s2, 256")); P.emit(raw("s_cbranch_scc1 L2_end"))
    P.emit(raw(f"s_load_dwordx2 s[{sT}:{sT+1}], s[0:1], 32")); P.emit(raw(f"s_load_dwordx2 s[{sT+2}:{sT+3}], s[0:1], 56"))
    t0, t1, t2 = vT, vT + 1, vT + 2
    sX, sBJ, sB, sJ = sT + 4, sT + 5, sT + 6, sT + 7
    e(f"v_lshrrev_b32 v{t0}, 6, v0"); e(f"v_lshlrev_b32 v{vBo}, 4, v0"); e(f"v_and_b32 v0, 63, v0"); e(f"v_readfirstlane_b32 s{sWave}, v{t0}")
    e(f"s_and_b32 s{sX}, s2, 7"); e(f"s_lshr_b32 s{sBJ}, s2, 3"); e(f"s_lshr_b32 s{sB}, s{sBJ}, 2"); e(f"s_and_b32 s{sJ}, s{sBJ}, 3")
    e(f"s_mul_i32 s{sM0}, s{sWave}, 5120"); e(f"s_mul_i32 s{sT+8}, s{sWave}, 320")
    e(f"v_lshlrev_b32 v{vBo}, 4, v0"); e(f"v_lshl_add_u32 v{vBo}, s{sWave}, 12, v{vBo}")
    for i in range(5):
        e(f"v_add_u32 v{t0}, s{sT+8}, v0"); e(f"v_add_u32 v{t0}, {64*i}, v{t0}")
        e(f"v_mul_u32_u24 v{t1}, 3277, v{t0}"); e(f"v_lshrrev_b32 v{t1}, 16, v{t1}")
        e(f"v_mul_u32_u24 v{t1}, {1280-320}, v{t1}"); e(f"v_lshl_add_u32 v{t1}, v{t0}, 4, v{t1}")
        e(f"v_subrev_u32 v{vWd+i}, {1024*(i&3)}, v{t1}")
    e(f"s_mul_i32 s{sT+8}, s{sX}, {768*1280}"); e(f"s_mul_i32 s{sT+9}, s{sJ}, 320"); e(f"s_add_u32 s{sT+8}, s{sT+8}, s{sT+9}")
    e(f"s_sub_u32 s{sW+2}, {6144*1280}, s{sT+8}"); e(f"s_mov_b32 s{sW+3}, 0x20000")
    e(f"s_lshl_b32 s{sT+9}, s{sB}, 3"); e(f"s_add_u32 s{sT+9}, s{sT+9}, s{sX}"); e(f"s_mul_i32 s{sT+9}, s{sT+9}, 368640")
    e(f"s_mov_b32 s{sO+2}, 368640"); e(f"s_mov_b32 s{sO+3}, 0x20000")
    e(f"s_mov_b32 s{sWoff}, 0"); e(f"s_mov_b32 s{sBoff}, 0")
    P.emit(raw("s_waitcnt lgkmcnt(0)"))
    e(f"s_add_u32 s{sW}, s{sT}, s{sT+8}"); e(f"s_addc_u32 s{sW+1}, s{sT+1}, 0")
    e(f"s_add_u32 s{sO}, s{sT+2}, s{sT+9}"); e(f"s_addc_u32 s{sO+1}, s{sT+3}, 0")
    def noww(j):
        m0, m1, ds, adv = wdma(j); emit_safe(P, [m0] + ds[:4] + [m1, ds[4], adv])
    def nowb(ks): emit_safe(P, [bload(ks, q) for q in range(4)] + [badv()])
    noww(0); nowb(0); nowb(1)
    e(f"v_lshrrev_b32 v{t0}, 2, v0"); e(f"v_and_b32 v{t1}, 3, v0"); e(f"v_mul_u32_u24 v{t0}, 320, v{t0}"); e(f"v_lshl_add_u32 v{vA}, v{t1}, 4, v{t0}")
    for i in range(1, 4): e(f"v_add_u32 v{vA+i}, {2*DT*i}, v{vA}")
    e(f"s_lshl_b32 s{sT+8}, s{sX}, 5"); e(f"s_add_u32 s{sT+8}, s{sT+8}, s{sBJ}"); e(f"s_mul_i32 s{sT+8}, s{sT+8}, {PSZ}"); e(f"s_add_u32 s{sT+8}, s{sT+8}, {PBASE}")
    e(f"s_add_u32 s{sP}, s{sT+2}, s{sT+8}"); e(f"s_addc_u32 s{sP+1}, s{sT+3}, 0"); e(f"s_mov_b32 s{sP+2}, {PSZ}"); e(f"s_mov_b32 s{sP+3}, 0x20000")
    e(f"s_mul_i32 s{sT+8}, s{sWave}, 20480"); e(f"v_lshlrev_b32 v{vPo}, 4, v0"); e(f"v_add_u32 v{vPo}, s{sT+8}, v{vPo}"); e(f"v_add_u32 v{vPo+1}, 4096, v{vPo}")
    for q in range(4): e(f"s_mov_b32 s{sT+10+q}, {5120*q}")
    noww(1); nowb(2); nowb(3)
    P.emit(waitreq(tiles=[("W", 0)])); P.emit(barrier([("W", 0)]))
    phases = []
    n = 0
    for j in range(12):
        mf = []; fr = []
        order = [(2 * j + u, nt) for u in range(2) for nt in range(10)] if j < 11 else [(22 + u, 2 * p + t) for p in range(5) for u in range(2) for t in range(2)]
        for i, (ks, nt) in enumerate(order):
            sl = n % NR; n += 1
            fr.append((ks, nt, sl, 4 * i + 3))
            for qt in range(4):
                b = (ks % BR) * 16 + 4 * qt; c = acc(nt, qt)
                rt = [(R("a", aRing + 4 * sl, 4), ("A", ks, nt)), (R("a", b, 4), ("B", ks, qt))]
                if ks: rt.append((R("v", c, 4), ("acc", ks - 1)))
                mf.append(mfma(("v", c), ("a", aRing + 4 * sl), ("a", b), ("v", c) if ks else None, rtag=rt, wtag=("acc", ks)))
        phases.append((mf, fr))
    q = []; last = {}; lastbar = -1
    for j, (mf, fr) in enumerate(phases):
        for ks, nt, sl, lu in fr:
            for o in areads(ks, nt, sl): q.append((o, max(last.get(sl, -1), lastbar + 1)))
            last[sl] = 80 * j + lu
        lastbar = 80 * j + BAR2
    for _ in range(12): P.emit(q.pop(0)[0])
    pool = []
    for j, (mf, fr) in enumerate(phases):
        fixed = {}; res = set()
        if j < 11:
            need = [("W", j + 1)]
            fixed[BAR2 - 1] = [waitreq(tiles=need, lds_all=True)]; fixed[BAR2] = [barrier(need)]; res |= {BAR2 - 3, BAR2 - 2, BAR2 - 1, BAR2}
        items = []
        if j + 2 < 12:
            m0, m1, ds, adv = wdma(j + 2)
            items += [([m0], ds[0], []), ([], ds[1], []), ([], ds[2], []), ([], ds[3], []), ([m1], ds[4], [adv])]
            for ks in (2 * j + 4, 2 * j + 5):
                items += [([], bload(ks, qt), [badv()] if qt == 3 else []) for qt in range(4)]
        g = 2
        for pre, o, post in items:
            while g in res or g - 1 in res or g + 1 in res: g += 1
            for x in pre: fixed.setdefault(g - 1, []).insert(0, x)
            fixed.setdefault(g, []).append(o); res.add(g)
            for x in post: fixed.setdefault(g + 1, []).insert(0, x)
            g += 5
        if j == 11:
            for p in range(5):
                for qt in range(4):
                    a = acc(2 * p, qt); ea = 16 * p + 12 + qt
                    for r in range(4): pool.append(I(f"v_cvt_pk_bf16_f32 v{a+r}, v{a+2*r}, v{a+2*r+1}", rtag=[([f"v{a+2*r}", f"v{a+2*r+1}"], ("acc", 23))], earliest=ea))
                    vo = vPo + (p >> 2)
                    pool.append(vstore(f"buffer_store_dwordx4 v[{a}:{a+3}], v{vo}, {srd(sP)}, s{sT+10+qt} offen offset:{1024*(p&3)} sc0 sc1", R("v", a, 4), [f"v{vo}", f"s{sT+10+qt}"] + srdr(sP)))
                    pool[-1].earliest = ea
        for g in range(80):
            if g in res or not q: continue
            o, after = q[0]
            if 80 * j + g >= after: fixed.setdefault(g, []).append(o); q.pop(0)
        st = [] if stats is not None else None
        schedule(P, mf, fixed, pool, stats=st, nxt=phases[j + 1][0][0] if j < 11 else None)
        if stats is not None: stats[j] = st
    assert not q
    for o in pool: o.meta["before"] = 0
    force(P, pool, 0)
    return P

def gen(verbose=False):
    stats = {}
    P = build(None, stats)
    errs = check(P.ops)
    for x in errs[:40]: print("ERR", x)
    assert not errs
    if verbose:
        for k, v in stats.items(): print(k, "".join(str(x) for x in v))
    return [o.text for o in P.ops] + ["L2_end:", "s_endpgm"]

def gen3():
    P = Prog(); e = lambda t: emit_safe(P, I(t))
    P.emit(raw(f"s_cmp_ge_u32 s2, {G3}")); P.emit(raw("s_cbranch_scc1 L3_end"))
    P.emit(raw("s_load_dwordx2 s[16:17], s[0:1], 40")); P.emit(raw("s_load_dwordx2 s[18:19], s[0:1], 56"))
    e("v_lshrrev_b32 v1, 6, v0"); e("v_lshlrev_b32 v2, 4, v0"); e("v_readfirstlane_b32 s3, v1")
    e("s_lshl_b32 s20, s2, 12"); e("v_add_u32 v2, s20, v2")
    e("s_lshl_b32 s20, s2, 2"); e("s_add_u32 s20, s20, s3")
    e("s_mul_i32 s21, s20, 3496"); e("s_lshr_b32 s21, s21, 18")
    e("s_mul_i32 s22, s21, 75"); e("s_sub_u32 s22, s20, s22")
    e("s_mul_i32 s23, s22, 205"); e("s_lshr_b32 s23, s23, 10")
    e("s_mul_i32 s24, s23, 5"); e("s_sub_u32 s24, s22, s24")
    e(f"s_mov_b32 s6, {32 * 8 * PSZ}"); e("s_mov_b32 s7, 0x20000")
    e(f"s_mov_b32 s10, {1920 * 1280}"); e("s_mov_b32 s11, 0x20000")
    for x in range(8): e(f"s_mov_b32 s{32+x}, {x * 32 * PSZ}")
    P.emit(raw("s_waitcnt lgkmcnt(0)"))
    e(f"s_add_u32 s4, s18, {PBASE}"); e("s_addc_u32 s5, s19, 0"); e("s_mov_b32 s8, s16"); e("s_mov_b32 s9, s17")
    for x in range(8):
        emit_safe(P, vload(f"buffer_load_dwordx4 v[{8+4*x}:{11+4*x}], v2, s[4:7], s{32+x} offen nt", R("v", 8 + 4 * x, 4), ["v2", f"s{32+x}"] + srdr(4)))
    e("s_lshr_b32 s25, s21, 2"); e("s_and_b32 s26, s21, 3")
    e("s_mul_i32 s25, s25, 307200"); e("s_mul_i32 s23, s23, 20480"); e("s_add_u32 s25, s25, s23")
    e("s_mul_i32 s26, s26, 320"); e("s_lshl_b32 s24, s24, 6"); e("s_add_u32 s25, s25, s26"); e("s_add_u32 s25, s25, s24")
    e("v_and_b32 v3, 15, v0"); e("v_mul_u32_u24 v3, 1280, v3"); e("v_bfe_u32 v4, v0, 4, 2"); e("v_lshl_add_u32 v3, v4, 4, v3")
    e("s_mov_b32 s27, 0xffff0000")
    for x in range(8):
        for r in range(4):
            s = 8 + 4 * x + r
            if x == 0:
                e(f"v_lshlrev_b32 v{40+2*r}, 16, v{s}"); e(f"v_and_b32 v{41+2*r}, s27, v{s}")
            else:
                e(f"v_lshlrev_b32 v{48+2*r}, 16, v{s}"); e(f"v_and_b32 v{49+2*r}, s27, v{s}")
                e(f"v_add_f32 v{40+2*r}, v{40+2*r}, v{48+2*r}"); e(f"v_add_f32 v{41+2*r}, v{41+2*r}, v{49+2*r}")
    for r in range(4): e(f"v_cvt_pk_bf16_f32 v{56+r}, v{40+2*r}, v{41+2*r}")
    emit_safe(P, vstore("buffer_store_dwordx4 v[56:59], v3, s[8:11], s25 offen", R("v", 56, 4), ["v3", "s25"] + srdr(8)))
    errs = check(P.ops); assert not errs, errs
    for W in range(2400):
        assert (W * 3496) >> 18 == W // 75
    for r in range(75): assert (r * 205) >> 10 == r // 5
    for p in range(1280): assert (p * 3277) >> 16 == p // 20
    return [o.text for o in P.ops] + ["L3_end:", "s_endpgm"]

if __name__ == "__main__":
    o = gen(True); print(len(o)); print(len(gen3()))
```

```python
import sys
import k1
HDR = open("standalone__gqa_block_cached__near_ridge.s.ref").read().split("; Override")[0]
def kern(name, body, nv, acc, align=8):
    return [f".globl {name}", f".p2align {align}", f".type {name},@function", f"{name}:"] + body
def desc(name, nv, acc):
    return [".p2align 6", f".amdhsa_kernel {name}", f"  .amdhsa_next_free_vgpr {nv}", "  .amdhsa_next_free_sgpr 102", f"  .amdhsa_accum_offset {acc}",
            "  .amdhsa_group_segment_fixed_size 0", "  .amdhsa_kernarg_size 64", "  .amdhsa_user_sgpr_count 2", "  .amdhsa_user_sgpr_kernarg_segment_ptr 1",
            "  .amdhsa_system_sgpr_workgroup_id_x 1", ".end_amdhsa_kernel"]
def main(which, path):
    N1 = "standalone__gqa_block_cached__near_ridge_kernel"
    ks = [(N1, k1.gen(), 512, 256, (256, 256, k1.LDS1))]
    if "2" in which:
        import k2
        ks.append(("oproj_kernel", k2.gen(), 512, 256, (256, 256, k2.LDS2)))
    if "3" in which:
        import k2
        ks.append(("reduce_kernel", k2.gen3(), 64, 64, (k2.G3, 256, 0)))
    out = [HDR.rstrip("\n")]
    if len(ks) == 1:
        g, b, l = ks[0][4]; out.append(f"; @launch grid=({g},1,1) block=({b},1,1) lds={l}")
    else:
        for n, _, _, _, (g, b, l) in ks: out.append(f"; @launch kernel={n} grid=({g},1,1) block=({b},1,1) lds={l}")
    out += ['.amdgcn_target "amdgcn-amd-amdhsa--gfx950"', ".text"]
    for n, body, nv, acc, _ in ks: out += kern(n, body, nv, acc)
    out.append('.section .rodata,"a"')
    for n, body, nv, acc, _ in ks: out += desc(n, nv, acc)
    open(path, "w").write("\n".join(out) + "\n")
if __name__ == "__main__":
    main(sys.argv[1], sys.argv[2])
```
